```python
import torch

def _softmax(x, axis=-1):
    return torch.softmax(x, dim=axis)
def _gelu(x):
    return torch.nn.functional.gelu(x, approximate="tanh")
def _silu(x):
    return torch.nn.functional.silu(x)
def _sigmoid(x):
    return torch.sigmoid(x)
def _layernorm(x, axis=-1, eps=1e-5):
    m = x.mean(dim=axis, keepdim=True)
    v = x.var(dim=axis, keepdim=True, unbiased=False)
    return (x - m) / torch.sqrt(v + eps)
def _scatter_add(tgt, idx, src, axis=0):
    return tgt.clone().index_add_(axis, idx, src)
def _segment_sum(src, seg, n):
    out = torch.zeros((n,) + src.shape[1:], dtype=src.dtype)
    return out.index_add_(0, seg, src)
def _pad(x, pw):
    flat = tuple(v for pair in reversed(pw) for v in pair)
    return torch.nn.functional.pad(x, flat)

kernel_name = 'gather_scatter__mpnn_edge_mlp__graph'

def setup_inputs():

    _w = (lambda a: (lambda t: t.to(torch.bfloat16) if t.is_floating_point() else t)(torch.as_tensor(a)))
    N, deg, D, De = 10000, 32, 128, max(0, 1)
    E = N * deg
    return {
        "x": _w((lambda *s: torch.randn(*s, dtype=torch.bfloat16) * 0.05)(N, D)),
        "e_attr": _w((lambda *s: torch.randn(*s, dtype=torch.bfloat16) * 0.4)(E, De)),
        "src": _w((lambda lo, hi, *s: torch.randint(lo, hi, s))(0, N, E).to(torch.int64)),
        "dst": _w((lambda lo, hi, *s: torch.randint(lo, hi, s))(0, N, E).to(torch.int64)),
        "w_msg": _w((lambda *s: torch.randn(*s, dtype=torch.bfloat16) * 0.4)(2 * D + De, D)),
        "w_upd": _w((lambda *s: torch.randn(*s, dtype=torch.bfloat16) * 0.05)(2 * D, D)),
    }

def reference(x, e_attr, src, dst, w_msg, w_upd):
    N, D = x.shape
    m_in = torch.concatenate([x[src], x[dst], e_attr], axis=-1)
    msg = _silu(m_in @ w_msg)
    agg = _segment_sum(msg, dst, N)
    return _silu(torch.concatenate([x, agg], axis=-1) @ w_upd)
```

```python
kernels=[]
def add_kernel(name, txt, nv=128, ns=64, acc=None):
    if acc is None: acc=nv
    head=f"""
.globl {name}
.p2align 8
.type {name},@function
{name}:
"""
    desc=f"""
.amdhsa_kernel {name}
  .amdhsa_next_free_vgpr {nv}
  .amdhsa_next_free_sgpr {ns}
  .amdhsa_accum_offset {acc}
  .amdhsa_group_segment_fixed_size 0
  .amdhsa_kernarg_size 16
  .amdhsa_user_sgpr_count 2
  .amdhsa_user_sgpr_kernarg_segment_ptr 1
  .amdhsa_system_sgpr_workgroup_id_x 1
  .amdhsa_float_denorm_mode_32 3
.end_amdhsa_kernel
"""
    meta=f"""  - .name: {name}
    .symbol: {name}.kd
    .kernarg_segment_size: 16
    .kernarg_segment_align: 8
    .group_segment_fixed_size: 0
    .private_segment_fixed_size: 0
    .wavefront_size: 64
    .sgpr_count: {ns}
    .vgpr_count: {nv}
    .max_flat_workgroup_size: 1024
    .args:
      - {{.name: a, .size: 8, .offset: 0, .value_kind: global_buffer, .address_space: global}}
      - {{.name: b, .size: 8, .offset: 8, .value_kind: global_buffer, .address_space: global}}
"""
    kernels.append((name,head+txt,desc,meta))
def emit(fn):
    out=".amdgcn_target \"amdgcn-amd-amdhsa--gfx950\"\n.text\n"
    for k in kernels: out+=k[1]
    out+='.section .rodata,"a"\n'
    for k in kernels: out+=".p2align 6\n"+k[2]
    out+=".amdgpu_metadata\n---\namdhsa.version: [1, 2]\namdhsa.kernels:\n"
    for k in kernels: out+=k[3]
    out+="...\n.end_amdgpu_metadata\n"
    open(fn,"w").write(out)
def epilogue(wpb, tick_lo="s16", aux="v4"):
    return f"""
    s_mul_i32 s9, s2, {wpb}
    s_add_u32 s9, s9, s8
    s_lshl_b32 s9, s9, 3
    v_mov_b32 v1, s9
    v_mov_b32 v2, {tick_lo}
    v_mov_b32 v3, {aux}
    v_and_b32 v0, 63, v0
    v_cmp_eq_u32 vcc, 0, v0
    s_and_saveexec_b64 s[20:21], vcc
    global_store_dwordx2 v1, v[2:3], s[6:7]
    s_endpgm
"""
```

```python
from common import *
t="""
    s_load_dwordx2 s[6:7], s[0:1], 8
    v_lshlrev_b32 v1, 4, v0
    s_lshl_b32 s8, s2, 14
    s_add_u32 s8, s8, 0x100000
    v_add_u32 v1, s8, v1
    v_mov_b32 v4, 1
    v_mov_b32 v5, 2
    v_mov_b32 v6, 3
    v_mov_b32 v7, 4
    s_waitcnt lgkmcnt(0)
    global_store_dwordx4 v1, v[4:7], s[6:7]
    s_endpgm
"""
add_kernel("wr",t,nv=16)
def rd(name,mode,NL):
    t=f"""
    s_load_dwordx2 s[6:7], s[0:1], 8
    v_lshrrev_b32 v1, 6, v0
    s_nop 0
    v_readfirstlane_b32 s8, v1
    s_memtime s[14:15]
    s_waitcnt lgkmcnt(0)
    s_lshr_b32 s9, s2, 3
    s_and_b32 s9, s9, 31
    s_mul_i32 s9, s9, 81920
    s_add_u32 s9, s9, 0x100000
"""
    if mode=="x4":
        t+="    v_lshlrev_b32 v2, 4, v0\n    v_add_u32 v2, s9, v2\n"
        for i in range(NL): t+=f"    global_load_dwordx4 v[{8+4*i}:{11+4*i}], v2, s[6:7]\n    v_add_u32 v2, 16384, v2\n"
    else:
        t+="    v_lshlrev_b32 v2, 7, v0\n    v_add_u32 v2, s9, v2\n    v_cmp_gt_u32 vcc, 640, v0\n    s_and_saveexec_b64 s[22:23], vcc\n    global_load_dword v8, v2, s[6:7]\n    s_mov_b64 exec, s[22:23]\n"
    t+=f"""
    s_waitcnt vmcnt(0)
    s_memtime s[16:17]
    s_waitcnt lgkmcnt(0)
    s_sub_u32 s16, s16, s14
    s_mul_i32 s9, s2, 16
    s_add_u32 s9, s9, s8
    s_lshl_b32 s9, s9, 3
    v_mov_b32 v1, s9
    v_mov_b32 v2, s16
    v_mov_b32 v3, s16
    v_and_b32 v0, 63, v0
    v_cmp_eq_u32 vcc, 0, v0
    s_and_saveexec_b64 s[20:21], vcc
    global_store_dwordx2 v1, v[2:3], s[6:7]
    s_endpgm
"""
    add_kernel(name,t,nv=32)
rd("rd_x4","x4",5); rd("rd_line","line",1); rd("rd_x4_2","x4",2)
emit("fill.s")
```

```python
from common import *
def K(name,flagmode,storeflags,nst):
    t=f"""
    s_load_dwordx2 s[4:5], s[0:1], 0
    s_load_dwordx2 s[6:7], s[0:1], 8
    v_lshrrev_b32 v1, 6, v0
    v_and_b32 v3, 63, v0
    v_readfirstlane_b32 s8, v1
    s_waitcnt lgkmcnt(0)
    s_barrier
    s_memrealtime s[14:15]
    s_memtime s[24:25]
    s_waitcnt lgkmcnt(0)
    v_lshlrev_b32 v2, 4, v0
    s_mul_i32 s9, s2, {nst*16384}
    s_add_u32 s9, s9, 0x100000
    v_add_u32 v2, s9, v2
    v_mov_b32 v4, 1
    v_mov_b32 v5, 2
    v_mov_b32 v6, 3
    v_mov_b32 v7, 4
"""
    for i in range(nst):
        t+=f"    global_store_dwordx4 v2, v[4:7], s[6:7] {storeflags}\n    v_add_u32 v2, 16384, v2\n"
    t+="""
    s_waitcnt vmcnt(0)
    s_barrier
    s_memtime s[26:27]
    s_cmp_eq_u32 s8, 0
    s_cbranch_scc0 L_wait_%s
"""%name
    if flagmode=="byte":
        t+="""
    v_mov_b32 v8, s2
    v_mov_b32 v9, 1
    s_mov_b64 exec, 1
    global_store_byte v8, v9, s[4:5] sc0 sc1
    s_mov_b64 exec, -1
    v_lshlrev_b32 v10, 2, v3
    s_mov_b32 s20, 0x01010101
L_poll_%s:
    global_load_dword v11, v10, s[4:5] sc0 sc1
    s_waitcnt vmcnt(0)
    v_cmp_ne_u32 vcc, s20, v11
    s_cbranch_vccz L_wait_%s
    s_add_u32 s30, s30, 1
    s_cmp_lt_u32 s30, 200000
    s_cbranch_scc1 L_poll_%s
"""%(name,name,name)
    else:
        t+="""
    s_and_b32 s21, s2, 7
    s_lshl_b32 s21, s21, 7
    v_mov_b32 v8, s21
    v_mov_b32 v9, 1
    s_mov_b64 exec, 1
    global_atomic_add v8, v9, s[4:5] sc1
    s_mov_b64 exec, -1
    v_and_b32 v10, 7, v3
    v_lshlrev_b32 v10, 7, v10
L_poll_%s:
    global_load_dword v11, v10, s[4:5] sc0 sc1
    s_waitcnt vmcnt(0)
    v_cmp_ne_u32 vcc, 32, v11
    s_cbranch_vccz L_wait_%s
    s_add_u32 s30, s30, 1
    s_cmp_lt_u32 s30, 200000
    s_cbranch_scc1 L_poll_%s
"""%(name,name,name)
    t+=f"""
L_wait_{name}:
    s_barrier
    s_memrealtime s[16:17]
    s_memtime s[28:29]
    s_waitcnt lgkmcnt(0)
    s_sub_u32 s26, s26, s24
    s_sub_u32 s28, s28, s24
    s_mul_i32 s9, s2, 16
    s_add_u32 s9, s9, s8
    s_lshl_b32 s9, s9, 4
    v_mov_b32 v1, s9
    v_mov_b32 v4, s14
    v_mov_b32 v5, s16
    v_mov_b32 v6, s26
    v_mov_b32 v7, s28
    v_cmp_eq_u32 vcc, 0, v3
    s_and_saveexec_b64 s[20:21], vcc
    global_store_dwordx4 v1, v[4:7], s[6:7]
    s_endpgm
"""
    t="    s_mov_b32 s30, 0\n"+t
    add_kernel(name,t,nv=32)
K("b_byte_sc","byte","sc0 sc1",2)
K("b_atom_sc","atom","sc0 sc1",2)
K("b_byte_nodata","byte","sc0 sc1",0)
K("b_atom_nodata","atom","sc0 sc1",0)
emit("gbar.s")
```

```python
from common import *
def K(name,flagmode,storeflags,nst,ncnt=8,sh=7):
    t=f"""
    s_load_dwordx2 s[4:5], s[0:1], 0
    s_load_dwordx2 s[6:7], s[0:1], 8
    v_lshrrev_b32 v1, 6, v0
    v_and_b32 v3, 63, v0
    v_readfirstlane_b32 s8, v1
    s_waitcnt lgkmcnt(0)
    s_barrier
    s_memrealtime s[14:15]
    s_memtime s[24:25]
    s_waitcnt lgkmcnt(0)
    v_lshlrev_b32 v2, 4, v0
    s_mul_i32 s9, s2, {nst*16384}
    s_add_u32 s9, s9, 0x100000
    v_add_u32 v2, s9, v2
    v_mov_b32 v4, 1
    v_mov_b32 v5, 2
    v_mov_b32 v6, 3
    v_mov_b32 v7, 4
"""
    for i in range(nst):
        t+=f"    global_store_dwordx4 v2, v[4:7], s[6:7] {storeflags}\n    v_add_u32 v2, 16384, v2\n"
    t+="""
    s_waitcnt vmcnt(0)
    s_barrier
    s_memtime s[26:27]
    s_cmp_eq_u32 s8, 0
    s_cbranch_scc0 L_wait_%s
"""%name
    if flagmode=="byte":
        t+="""
    v_mov_b32 v8, s2
    v_mov_b32 v9, 1
    s_mov_b64 exec, 1
    global_store_byte v8, v9, s[4:5] sc0 sc1
    s_mov_b64 exec, -1
    v_lshlrev_b32 v10, 2, v3
    s_mov_b32 s20, 0x01010101
L_poll_%s:
    global_load_dword v11, v10, s[4:5] sc0 sc1
    s_waitcnt vmcnt(0)
    v_cmp_ne_u32 vcc, s20, v11
    s_cbranch_vccz L_wait_%s
    s_add_u32 s30, s30, 1
    s_cmp_lt_u32 s30, 200000
    s_cbranch_scc1 L_poll_%s
"""%(name,name,name)
    else:
        t+="""
    s_and_b32 s21, s2, %d
    s_lshl_b32 s21, s21, %d
    v_mov_b32 v8, s21
    v_mov_b32 v9, 1
    s_mov_b64 exec, 1
    global_atomic_add v8, v9, s[4:5] sc1
    s_mov_b64 exec, -1
    v_and_b32 v10, %d, v3
    v_lshlrev_b32 v10, %d, v10
L_poll_%s:
    global_load_dword v11, v10, s[4:5] sc0 sc1
    s_waitcnt vmcnt(0)
    v_cmp_ne_u32 vcc, s22, v11
    s_cbranch_vccz L_wait_%s
    s_add_u32 s30, s30, 1
    s_cmp_lt_u32 s30, 200000
    s_cbranch_scc1 L_poll_%s
"""%(ncnt-1,sh,ncnt-1,sh,name,name,name)
    t+=f"""
L_wait_{name}:
    s_barrier
    s_memrealtime s[16:17]
    s_memtime s[28:29]
    s_waitcnt lgkmcnt(0)
    s_sub_u32 s26, s26, s24
    s_sub_u32 s28, s28, s24
    s_mul_i32 s9, s2, 16
    s_add_u32 s9, s9, s8
    s_lshl_b32 s9, s9, 4
    v_mov_b32 v1, s9
    v_mov_b32 v4, s14
    v_mov_b32 v5, s16
    v_mov_b32 v6, s26
    v_mov_b32 v7, s28
    v_cmp_eq_u32 vcc, 0, v3
    s_and_saveexec_b64 s[20:21], vcc
    global_store_dwordx4 v1, v[4:7], s[6:7]
    s_endpgm
"""
    t="    s_mov_b32 s30, 0\n    s_mov_b32 s22, %d\n"%(256//ncnt)+t
    add_kernel(name,t,nv=32)
K("a8_128","atom","sc0 sc1",0,8,7)
K("a8_32","atom","sc0 sc1",0,8,5)
K("a4_64","atom","sc0 sc1",0,4,6)
K("a2_128","atom","sc0 sc1",0,2,7)
K("a16_16","atom","sc0 sc1",0,16,4)
K("a1","atom","sc0 sc1",0,1,7)
K("a8_32_d1","atom","sc0 sc1",1,8,5)
K("a8_32_d1p","atom","",1,8,5)
emit("gbar.s")
```

```python
from common import *
t="""
    s_load_dwordx2 s[6:7], s[0:1], 8
    s_getreg_b32 s10, hwreg(HW_REG_TRAPSTS)
    v_mov_b32 v2, 0x7149f2ca
    v_mov_b32 v3, 0x7149f2ca
    v_mov_b32 v4, 1.0
    v_mov_b32 v5, 1.0
    v_pk_mul_f32 v[6:7], v[4:5], v[4:5]
    s_nop 4
    s_getreg_b32 s11, hwreg(HW_REG_TRAPSTS)
    v_pk_mul_f32 v[6:7], v[2:3], v[2:3]
    s_nop 7
    s_nop 7
    s_getreg_b32 s12, hwreg(HW_REG_TRAPSTS)
    s_setreg_imm32_b32 hwreg(HW_REG_TRAPSTS, 0, 9), 0
    s_nop 4
    s_getreg_b32 s13, hwreg(HW_REG_TRAPSTS)
    v_pk_fma_f32 v[6:7], v[2:3], v[2:3], v[4:5]
    s_nop 7
    s_nop 7
    s_getreg_b32 s14, hwreg(HW_REG_TRAPSTS)
    s_setreg_imm32_b32 hwreg(HW_REG_TRAPSTS, 0, 9), 0
    v_mov_b32 v8, 0x43480000
    v_exp_f32 v9, v8
    s_nop 7
    s_nop 7
    s_getreg_b32 s15, hwreg(HW_REG_TRAPSTS)
    s_getreg_b32 s16, hwreg(HW_REG_MODE)
    s_waitcnt lgkmcnt(0)
    v_mov_b32 v10, s10
    v_mov_b32 v11, s11
    v_mov_b32 v12, s12
    v_mov_b32 v13, s13
    v_mov_b32 v14, s14
    v_mov_b32 v15, s15
    v_mov_b32 v16, s16
    v_mov_b32 v17, v9
    v_lshlrev_b32 v0, 5, v0
    global_store_dwordx4 v0, v[10:13], s[6:7]
    global_store_dwordx4 v0, v[14:17], s[6:7] offset:16
    s_endpgm
"""
add_kernel("trap",t,nv=32)
emit("trap.s")
```
